```python
import torch

def _softmax(x, axis=-1):
    return torch.softmax(x, dim=axis)
def _gelu(x):
    return torch.nn.functional.gelu(x, approximate="tanh")
def _silu(x):
    return torch.nn.functional.silu(x)
def _sigmoid(x):
    return torch.sigmoid(x)
def _layernorm(x, axis=-1, eps=1e-5):
    m = x.mean(dim=axis, keepdim=True)
    v = x.var(dim=axis, keepdim=True, unbiased=False)
    return (x - m) / torch.sqrt(v + eps)
def _scatter_add(tgt, idx, src, axis=0):
    return tgt.clone().index_add_(axis, idx, src)
def _segment_sum(src, seg, n):
    out = torch.zeros((n,) + src.shape[1:], dtype=src.dtype)
    return out.index_add_(0, seg, src)
def _pad(x, pw):
    flat = tuple(v for pair in reversed(pw) for v in pair)
    return torch.nn.functional.pad(x, flat)

kernel_name = 'concat_heads__gqa_block_cached__mha_block_cached__near_ridge'

def setup_inputs():

    _w = (lambda a: (lambda t: t.to(torch.bfloat16) if t.is_floating_point() else t)(torch.as_tensor(a)))
    def _A_setup():
        B, Sq, D = 8, 48, 1024
        Hq, Hkv, Sk, Dh = 32, 4, 2048, 128
        assert Hq % Hkv == 0, (Hq, Hkv)
        return {
            "x": _w((lambda *s: torch.randn(*s, dtype=torch.bfloat16) * 0.8)(B, Sq, D)),
            "k_cache": _w((lambda *s: torch.randn(*s, dtype=torch.bfloat16) * 0.8)(B, Hkv, Sk, Dh)),
            "v_cache": _w((lambda *s: torch.randn(*s, dtype=torch.bfloat16) * 0.05)(B, Hkv, Sk, Dh)),
            "wq": _w((lambda *s: torch.randn(*s, dtype=torch.bfloat16) * 0.8)(D, Hq * Dh) * (D ** -0.5)),
            "wo": _w((lambda *s: torch.randn(*s, dtype=torch.bfloat16) * 0.05)(Hq * Dh, D) * ((Hq * Dh) ** -0.5)),
        }
    _A_in = _A_setup()

    def _B_setup():
        B, Sq, D = 8, 48, 1024
        H, Sk, Dh = 32, 2048, 128
        return {
            "x": _w((lambda *s: torch.randn(*s, dtype=torch.bfloat16) * 0.8)(B, Sq, D)),
            "k_cache": _w((lambda *s: torch.randn(*s, dtype=torch.bfloat16) * 0.8)(B, H, Sk, Dh)),
            "v_cache": _w((lambda *s: torch.randn(*s, dtype=torch.bfloat16) * 0.05)(B, H, Sk, Dh)),
            "wq": _w((lambda *s: torch.randn(*s, dtype=torch.bfloat16) * 0.8)(D, H * Dh) * (D ** -0.5)),
            "wo": _w((lambda *s: torch.randn(*s, dtype=torch.bfloat16) * 0.05)(H * Dh, D) * ((H * Dh) ** -0.5)),
        }
    _B_in = _B_setup()

    return {
        "A_x": _A_in["x"],
        "A_k_cache": _A_in["k_cache"],
        "A_v_cache": _A_in["v_cache"],
        "A_wq": _A_in["wq"],
        "A_wo": _A_in["wo"],
        "B_x": _B_in["x"],
        "B_k_cache": _B_in["k_cache"],
        "B_v_cache": _B_in["v_cache"],
        "B_wq": _B_in["wq"],
        "B_wo": _B_in["wo"],
    }

def reference(A_x, A_k_cache, A_v_cache, A_wq, A_wo, B_x, B_k_cache, B_v_cache, B_wq, B_wo):
    def _A_ref(x, k_cache, v_cache, wq, wo):
        B, Sq, D = x.shape
        Hq, Dh = 32, 128
        Hkv = k_cache.shape[1]
        rep = Hq // Hkv
        q = (lambda x, *d: x.permute(*d))((x @ wq).reshape(B, Sq, Hq, Dh), 0, 2, 1, 3)
        k = (lambda x, n, axis: torch.repeat_interleave(x, n, dim=axis))(k_cache, rep, axis=1)
        v = (lambda x, n, axis: torch.repeat_interleave(x, n, dim=axis))(v_cache, rep, axis=1)
        scores = torch.einsum("bhqd,bhkd->bhqk", q, k) * (Dh ** -0.5)
        p = _softmax(scores, axis=-1)
        o = torch.einsum("bhqk,bhkd->bhqd", p, v)
        return (lambda x, *d: x.permute(*d))(o, 0, 2, 1, 3).reshape(B, Sq, Hq * Dh) @ wo

    def _B_ref(x, k_cache, v_cache, wq, wo):
        B, Sq, D = x.shape
        H, Dh = 32, 128
        q = (lambda x, *d: x.permute(*d))((x @ wq).reshape(B, Sq, H, Dh), 0, 2, 1, 3)
        scores = torch.einsum("bhqd,bhkd->bhqk", q, k_cache) * (Dh ** -0.5)
        p = _softmax(scores, axis=-1)
        o = torch.einsum("bhqk,bhkd->bhqd", p, v_cache)
        return (lambda x, *d: x.permute(*d))(o, 0, 2, 1, 3).reshape(B, Sq, H * Dh) @ wo

    a = _A_ref(A_x, A_k_cache, A_v_cache, A_wq, A_wo)
    b = _B_ref(B_x, B_k_cache, B_v_cache, B_wq, B_wo)
    return torch.concatenate([a, b], axis=-1)
```

```python
import re

TRANS = ("v_exp_f32", "v_log_f32", "v_rcp_f32", "v_rsq_f32", "v_sqrt_f32", "v_sin_f32", "v_cos_f32", "v_rcp_iflag_f32")

def regs_of(op):
    op = op.strip()
    op = op.replace("-", "").replace("abs(", "").replace(")", "").replace("|", "")
    m = re.fullmatch(r"([vsa])(\d+)", op)
    if m: return {(m.group(1), int(m.group(2)))}
    m = re.fullmatch(r"([vsa])\[(\d+):(\d+)\]", op)
    if m: return {(m.group(1), i) for i in range(int(m.group(2)), int(m.group(3)) + 1)}
    if op in ("vcc", "vcc_lo", "vcc_hi"): return {("s", "vcc")}
    if op in ("exec", "exec_lo", "exec_hi"): return {("s", "exec")}
    if op == "m0": return {("s", "m0")}
    return set()

class Ins:
    def __init__(self, text):
        self.text = text
        t = text.split(";")[0].strip()
        self.label = None; self.mn = None
        self.w = set(); self.r = set()
        self.kind = "none"
        self.target = None
        if not t or t.startswith("."): return
        if t.endswith(":"):
            self.label = t[:-1]; return
        sp = t.split(None, 1)
        mn = sp[0]; self.mn = mn
        rest = sp[1] if len(sp) > 1 else ""
        ops = [o.strip() for o in rest.split(",")] if rest else []
        mods = ""
        if ops:
            l = ops[-1].split()
            if l:
                ops[-1] = l[0]; mods = " ".join(l[1:])
        self.ops = ops; self.mods = mods
        R = [regs_of(o) for o in ops]
        base = re.sub(r"_(e32|e64|dpp|sdwa)$", "", mn)
        self.base = base
        self.srcA = self.srcB = self.srcC = set()
        self.dpp = ("row_" in mods or "quad_perm" in mods or "wave_" in mods or mn.endswith("_dpp"))
        if mn.startswith("v_mfma"):
            self.kind = "mfma"; self.w = R[0]; self.srcA, self.srcB, self.srcC = R[1], R[2], R[3]
            self.r = R[1] | R[2] | R[3]
            self.passes = 8 if "32x32x16" in mn else 4
        elif mn.startswith("v_"):
            self.kind = "valu"
            if base.startswith("v_cmp"):
                self.w = set(R[0]); self.r = set().union(*R[1:])
                if base.startswith("v_cmpx"): self.w |= {("s", "exec")}
            elif base.startswith("v_permlane") and "swap" in base:
                self.w = R[0] | R[1]; self.r = R[0] | R[1]
            elif base in ("v_add_co_u32", "v_sub_co_u32", "v_addc_co_u32", "v_subb_co_u32"):
                self.w = R[0] | R[1]; self.r = set().union(*R[2:])
            elif base == "v_nop":
                pass
            else:
                self.w = set(R[0]); self.r = set().union(*R[1:]) if len(R) > 1 else set()
                if base.startswith("v_fmac") or base.startswith("v_pk_fmac") or base == "v_writelane_b32" or self.dpp: self.r |= R[0]
        elif mn.startswith("ds_"):
            self.kind = "ds"
            if mn.startswith("ds_read") or mn.startswith("ds_bpermute") or mn.startswith("ds_swizzle") or mn.startswith("ds_permute") or "_rtn" in mn:
                self.w = R[0]; self.r = set().union(*R[1:])
            else:
                self.r = set().union(*R)
        elif mn.startswith("buffer_") or mn.startswith("global_"):
            self.kind = "vmem"
            self.lds = ("lds" in mods.split()) or "load_lds" in mn
            self.sdata = set()
            if mn in ("buffer_wbl2", "buffer_inv"):
                pass
            elif self.lds:
                self.r = set().union(*R) | {("s", "m0")}
            elif "load" in mn:
                self.w = R[0]; self.r = set().union(*R[1:])
            else:
                self.r = set().union(*R)
                d = R[0] if mn.startswith("buffer_") else R[1]
                if "atomic" in mn and "sc0" in mods.split(): self.w = R[0]
                if "x3" in mn or "x4" in mn: self.sdata = d
        elif mn.startswith("s_"):
            self.kind = "salu"
            if mn.startswith("s_cbranch") or mn == "s_branch":
                self.kind = "branch"; self.target = ops[0]
            elif mn in ("s_waitcnt", "s_barrier", "s_nop", "s_sleep", "s_setprio", "s_endpgm"):
                self.kind = "misc"
            elif mn.startswith("s_cmp") or mn.startswith("s_bitcmp"):
                self.r = set().union(*R)
            elif mn.startswith("s_setpc"):
                self.kind = "ret"; self.r = R[0]
            elif mn.startswith("s_swappc") or mn.startswith("s_call"):
                self.kind = "call"; self.w = R[0]
            else:
                self.w = set(R[0]) if R else set(); self.r = set().union(*R[1:]) if len(R) > 1 else set()
                if "saveexec" in mn: self.w |= {("s", "exec")}
        else:
            raise ValueError("unknown instruction: " + text)
    def states(self):
        if self.mn is None: return 0
        if self.mn == "s_nop": return int(self.ops[0], 0) + 1
        return 1

def vg(s): return {x for x in s if x[0] in "va"}
def sg(s): return {x for x in s if x[0] == "s"}

def need(p, c):
    n = 0
    if p.kind == "valu":
        pw = vg(p.w); ps = sg(p.w)
        if c.kind == "mfma":
            if pw & c.r: n = max(n, 2)
            if ("s", "exec") in ps: n = max(n, 4)
        if c.kind == "valu":
            if c.base in ("v_readfirstlane_b32", "v_readlane_b32") and pw & vg(c.r): n = max(n, 1)
            if c.base.startswith("v_permlane") and pw & c.r: n = max(n, 2)
            if c.dpp and pw & c.r: n = max(n, 2)
            if c.dpp and ("s", "exec") in ps: n = max(n, 5)
            if p.base in TRANS and c.base not in TRANS and pw & (c.r): n = max(n, 1)
            cr = sg(c.r)
            if c.base.startswith("v_cndmask") and len(c.ops) < 4: cr = cr | {("s", "vcc")}
            if (ps - {("s", "exec")}) & cr:
                n = max(n, 4 if c.base in ("v_readlane_b32", "v_writelane_b32") else 2)
            if ("s", "exec") in ps and (c.base in ("v_readlane_b32", "v_readfirstlane_b32", "v_writelane_b32") or c.base.startswith("v_permlane")): n = max(n, 4)
        if c.kind == "vmem" and ps & sg(c.r): n = max(n, 5)
    if p.kind == "mfma":
        big = {4: 8, 8: 12}[p.passes]
        if c.kind == "mfma":
            if p.w & (c.srcA | c.srcB): n = max(n, big)
            if p.w & c.srcC and not (p.w == c.srcC and p.passes == c.passes): n = max(n, big - 2)
            if p.w & c.w and not (p.w == c.srcC): n = max(n, big - 2)
        elif c.kind in ("valu", "ds", "vmem"):
            if p.w & (c.r | c.w): n = max(n, big)
            if c.kind == "valu" and vg(p.srcC) & c.w: n = max(n, {4: 3, 8: 7}[p.passes])
            if c.kind in ("ds", "vmem") and vg(p.srcC) & c.w: n = max(n, {4: 3, 8: 7}[p.passes])
    if p.kind == "salu" and ("s", "m0") in p.w and c.kind == "vmem" and getattr(c, "lds", False): n = max(n, 1)
    if p.kind == "vmem" and getattr(p, "sdata", None):
        if c.kind in ("valu", "mfma") and p.sdata & c.w: n = max(n, 2)
        elif c.kind in ("ds", "vmem") and p.sdata & c.w: n = max(n, 1)
    return n

MAXD = 14
def fix(lines, verbose=False):
    ins = [Ins(l) for l in lines]
    added = 0
    while True:
        labels = {x.label: i for i, x in enumerate(ins) if x.label}
        jumps = {}
        rets = [i for i, x in enumerate(ins) if x.kind == "ret"]
        calls = [i for i, x in enumerate(ins) if x.kind == "call"]
        for i, x in enumerate(ins):
            if x.kind == "branch": jumps.setdefault(labels[x.target], []).append(i)
        def preds(i):
            out = []
            if i > 0:
                q = ins[i-1]
                if q.kind == "call": out += rets + [i-1]
                elif not (q.mn in ("s_branch", "s_endpgm") or q.kind == "ret"): out.append(i-1)
            out += jumps.get(i, [])
            if ins[i].label and ins[i].label.startswith("F_"): out += calls
            return out
        changed = False
        for i, c in enumerate(ins):
            if c.kind not in ("valu", "mfma", "ds", "vmem"): continue
            worst = 0; why = None
            stack = [(j, 0) for j in preds(i)]
            seen = {}
            while stack:
                j, d = stack.pop()
                if d >= MAXD or seen.get(j, 99) <= d: continue
                seen[j] = d
                p = ins[j]
                if p.mn:
                    n = need(p, c)
                    if n - d > worst: worst = n - d; why = p
                d2 = d + p.states()
                for k in preds(j): stack.append((k, d2))
            if worst > 0:
                if verbose: print(f"nop {worst} before '{c.text.strip()}' due to '{why.text.strip()}'")
                ins.insert(i, Ins(f"  s_nop {worst-1}"))
                added += 1; changed = True
                break
        if not changed: break
    return [x.text for x in ins], added
```

```python
import sys, struct
import asmtool

NAME = "concat_heads__gqa_block_cached__mha_block_cached__near_ridge"
KERN = NAME + "_kernel"

class Opt:
    stamps = False
    kvpolB = "nt"
    kvpolA = "nt"
    wpol = ""
    depth = 8
    T = 16.0
    prio = True
opt = Opt()

out = []
def A(s): out.append("  " + s)
def L(s): out.append(s + ":")
def C(s): out.append("  ; " + s)
def v(i, n=1): return f"v{i}" if n == 1 else f"v[{i}:{i+n-1}]"
def s(i, n=1): return f"s{i}" if n == 1 else f"s[{i}:{i+n-1}]"
def f2u(x): return struct.unpack("<I", struct.pack("<f", x))[0]

WS_O = 0
WS_EX = 2*256*12288
WS_OF = WS_EX + 512*6144
WS_EF = WS_OF + 16*128
WS_ST = WS_EF + 512*128
WS_USED = WS_ST + 256*8*64

WG, WV = 2, 3
R0, R1, R2, R3 = 4, 8, 12, 16
T0, T1, T2, T3, T4, T5, T6, T7 = 20, 21, 22, 23, 24, 25, 26, 27
CNT, ROT = 28, 29
LINK = 30
SLA, SLB, SLC = 32, 33, 34
MODE = 35
P_AX, P_AK, P_AV, P_AWQ, P_AWO, P_BX, P_BK, P_BV, P_BWQ, P_BWO, P_OUT, P_DBG, P_WS = range(36, 62, 2)
XCD, JJ, ROLE = 62, 63, 64
QDST, ITEM, KQ, HH = 65, 66, 67, 68
THR, LB = 69, 70
VSA, VSB = 71, 72
SIDE, BAT, CT, KH = 73, 74, 75, 76
SPIN = 77
EX0 = 78
SOFF = 80
LINK2 = 82
STAMP0 = 86
nstamp = [0]

def srd(r, ptr, off_s, size):
    if off_s is None:
        A(f"s_mov_b32 {s(r)}, {s(ptr)}"); A(f"s_mov_b32 {s(r+1)}, {s(ptr+1)}")
    else:
        A(f"s_add_u32 {s(r)}, {s(ptr)}, {off_s}"); A(f"s_addc_u32 {s(r+1)}, {s(ptr+1)}, 0")
    A(f"s_mov_b32 {s(r+2)}, {size}")
    A(f"s_mov_b32 {s(r+3)}, 0x20000")

def stamp(k):
    if not opt.stamps: return
    A(f"s_memrealtime {s(84,2)}")
    A("s_waitcnt lgkmcnt(0)")
    A(f"s_mov_b32 {s(STAMP0+k)}, s84")

def mfma(d, a, b, c):
    cs = "0" if c is None else v(c, 4)
    A(f"v_mfma_f32_16x16x32_bf16 {v(d,4)}, {v(a,4)}, {v(b,4)}, {cs}")

def dma(voff, r, soff, off, pol):
    o = f" offset:{off}" if off else ""
    p = f" {pol}" if pol else ""
    A(f"buffer_load_dwordx4 {v(voff)}, {s(r,4)}, {soff} offen{o}{p} lds")

QSLOT = 45056
Q0, Q1 = 135168, 147456
def gen_qproj():
    VW, VX, WA, XA, TA = 2, 6, 8, 9, 13
    ACC, XF, WF = 20, 32, 80
    L("F_qproj")
    C("lane constants")
    A(f"v_lshrrev_b32 v13, 4, v0")
    A(f"v_and_b32 v14, 15, v0")
    A(f"v_lshlrev_b32 v15, 1, v13")
    A(f"v_xor_b32 v15, v15, v14")
    A(f"v_lshlrev_b32 v15, 4, v15")
    A(f"v_lshl_add_u32 {v(VW)}, v13, 13, v15")
    A(f"v_add_u32 {v(VW+1)}, {32768-1024}, {v(VW)}")
    A(f"v_xor_b32 {v(VW+2)}, 128, {v(VW)}")
    A(f"v_add_u32 {v(VW+2)}, {2*(32768-1024)}, {v(VW+2)}")
    A(f"v_add_u32 {v(VW+3)}, {32768-1024}, {v(VW+2)}")
    A(f"s_mul_i32 {s(T0)}, {s(WV)}, 6")
    for t in range(2):
        A(f"v_add_u32 v15, {s(T0)}, v13")
        if t: A(f"v_add_u32 v15, 4, v15")
        A(f"v_and_b32 v16, 3, v15")
        A(f"v_lshrrev_b32 v17, 1, v15")
        A(f"v_and_b32 v17, 4, v17")
        A(f"v_or_b32 v16, v16, v17")
        A(f"v_lshlrev_b32 v16, 1, v16")
        A(f"v_xor_b32 v16, v16, v14")
        A(f"v_lshlrev_b32 v16, 4, v16")
        A(f"v_lshl_add_u32 {v(VX+t)}, v15, 11, v16")
        if t: A(f"v_subrev_u32 {v(VX+t)}, 1024, {v(VX+t)}")
    A(f"s_lshl_b32 {s(T4)}, {s(WV)}, 17")
    A(f"s_lshl_b32 {s(T5)}, {s(WV)}, 12")
    A(f"s_mul_i32 {s(T6)}, {s(WV)}, 1536")
    A(f"s_add_u32 {s(T6)}, {s(T6)}, 32768")
    A(f"s_mov_b32 {s(SLA)}, 0"); A(f"s_mov_b32 {s(SLB)}, {QSLOT}"); A(f"s_mov_b32 {s(SLC)}, {2*QSLOT}")
    def issue(stage_s, slot):
        A(f"s_add_u32 {s(T0)}, {stage_s}, {s(ROT)}")
        A(f"s_and_b32 {s(T0)}, {s(T0)}, 7")
        A(f"s_lshl_b32 {s(T1)}, {s(T0)}, 20")
        A(f"s_add_u32 {s(T1)}, {s(T1)}, {s(T4)}")
        A(f"s_add_u32 m0, {s(slot)}, {s(T5)}")
        A(f"s_lshl_b32 {s(T0)}, {s(T0)}, 8")
        for j in range(4): dma(VW+j, R1, s(T1), j*1024, opt.wpol)
        A(f"s_add_u32 m0, {s(slot)}, {s(T6)}")
        A(f"s_nop 0")
        dma(VX, R0, s(T0), 0, opt.wpol)
        A(f"s_mov_b32 exec_hi, 0")
        dma(VX+1, R0, s(T0), 1024, opt.wpol)
        A(f"s_mov_b32 exec_hi, -1")
    issue("0", SLA)
    issue("1", SLB)
    C("W^T fragment address: row 8g+r, 32B group (w ^ f'), 8B piece c'")
    A(f"v_lshrrev_b32 v15, 2, v14")
    A(f"v_and_b32 v16, 1, v13")
    A(f"v_lshl_or_b32 v16, v16, 2, v15")
    A(f"v_xor_b32 v16, {s(WV)}, v16")
    A(f"v_lshlrev_b32 v16, 5, v16")
    A(f"v_lshl_add_u32 v15, v13, 3, v15")
    A(f"v_lshl_add_u32 v16, v15, 8, v16")
    A(f"v_and_b32 v17, 3, v0")
    A(f"v_lshl_add_u32 {v(WA)}, v17, 3, v16")
    C("x fragment address: row i, chunk (4ks+g) ^ (f'(i)<<1)")
    A(f"v_and_b32 v15, 3, v14")
    A(f"v_lshrrev_b32 v16, 1, v14")
    A(f"v_and_b32 v16, 4, v16")
    A(f"v_or_b32 v15, v15, v16")
    A(f"v_lshlrev_b32 v15, 1, v15")
    A(f"v_xor_b32 v15, v15, v13")
    A(f"v_lshlrev_b32 v15, 4, v15")
    A(f"v_lshl_add_u32 v15, v14, 8, v15")
    A(f"v_add_u32 {v(XA)}, 32768, v15")
    for ks in range(1, 4): A(f"v_xor_b32 {v(XA+ks)}, {ks*64}, {v(XA)}")
    for r in range(12): A(f"v_mov_b32 {v(ACC+r)}, 0")
    A(f"s_mov_b32 {s(CNT)}, 0")
    L("L_q_loop")
    A(f"s_cmp_eq_u32 {s(CNT)}, 7")
    A("s_cbranch_scc1 L_q_w0")
    A("s_waitcnt vmcnt(6)")
    A("s_branch L_q_w1")
    L("L_q_w0")
    A("s_waitcnt vmcnt(0)")
    L("L_q_w1")
    A("s_barrier")
    A(f"v_add_u32 {v(TA)}, {s(SLA)}, {v(WA)}")
    for ks in range(4): A(f"v_add_u32 {v(TA+1+ks)}, {s(SLA)}, {v(XA+ks)}")
    def reads(ks):
        A(f"ds_read_b64_tr_b16 {v(WF+4*ks,2)}, {v(TA)} offset:{ks*8192}")
        A(f"ds_read_b64_tr_b16 {v(WF+4*ks+2,2)}, {v(TA)} offset:{ks*8192+1024}")
        for qb in range(3):
            A(f"ds_read_b128 {v(XF+(ks*3+qb)*4,4)}, {v(TA+1+ks)} offset:{qb*4096}")
    reads(0); reads(1); reads(2)
    A(f"s_cmp_ge_u32 {s(CNT)}, 6")
    A("s_cbranch_scc1 L_q_noissue")
    A(f"s_add_u32 {s(T2)}, {s(CNT)}, 2")
    issue(s(T2), SLC)
    L("L_q_noissue")
    A("s_waitcnt lgkmcnt(10)")
    for qb in range(3): mfma(ACC+4*qb, WF, XF+qb*4, ACC+4*qb)
    reads(3)
    for ks in range(1, 4):
        A(f"s_waitcnt lgkmcnt({15-5*ks})")
        for qb in range(3): mfma(ACC+4*qb, WF+4*ks, XF+(ks*3+qb)*4, ACC+4*qb)
    A(f"s_mov_b32 {s(T0)}, {s(SLA)}"); A(f"s_mov_b32 {s(SLA)}, {s(SLB)}"); A(f"s_mov_b32 {s(SLB)}, {s(SLC)}"); A(f"s_mov_b32 {s(SLC)}, {s(T0)}")
    A(f"s_add_u32 {s(CNT)}, {s(CNT)}, 1")
    A(f"s_cmp_lt_u32 {s(CNT)}, 8")
    A("s_cbranch_scc1 L_q_loop")
    C("scale, round, write Q fragments: piece (c=w>>1, qb), lane' (g'=2(w&1)+(g>>1), q), half g&1")
    A(f"s_lshr_b32 {s(T0)}, {s(WV)}, 1")
    A(f"s_mul_i32 {s(T0)}, {s(T0)}, 3072")
    A(f"s_and_b32 {s(T1)}, {s(WV)}, 1")
    A(f"s_lshl_b32 {s(T1)}, {s(T1)}, 9")
    A(f"s_add_u32 {s(T0)}, {s(T0)}, {s(T1)}")
    A(f"s_add_u32 {s(T0)}, {s(T0)}, {s(QDST)}")
    A(f"v_lshrrev_b32 v13, 5, v0")
    A(f"v_lshlrev_b32 v13, 8, v13")
    A(f"v_and_b32 v14, 15, v0")
    A(f"v_lshl_add_u32 v13, v14, 4, v13")
    A(f"v_bfe_u32 v14, v0, 4, 1")
    A(f"v_lshl_add_u32 v13, v14, 3, v13")
    A(f"v_add_u32 v13, {s(T0)}, v13")
    sc = f2u(1.4426950408889634 * 128 ** -0.5)
    for qb in range(3):
        for r in range(4): A(f"v_mul_f32 {v(ACC+4*qb+r)}, {hex(sc)}, {v(ACC+4*qb+r)}")
        A(f"v_cvt_pk_bf16_f32 {v(ACC+4*qb)}, {v(ACC+4*qb)}, {v(ACC+4*qb+1)}")
        A(f"v_cvt_pk_bf16_f32 {v(ACC+4*qb+1)}, {v(ACC+4*qb+2)}, {v(ACC+4*qb+3)}")
        A(f"ds_write_b64 v13, {v(ACC+4*qb,2)} offset:{qb*1024}")
    A("s_waitcnt lgkmcnt(0)")
    A("s_barrier")
    A(f"s_setpc_b64 {s(LINK,2)}")

KB, VB, DV = 1, 2, 3
ONES, NM, LS, SS, KV, QQ, OO = 16, 20, 32, 44, 68, 100, 148
VS0 = 98304
CST = 147456
def gen_attn():
    L("F_attn")
    A(f"s_and_b32 {s(KQ)}, {s(WV)}, 3")
    A(f"s_lshr_b32 {s(HH)}, {s(WV)}, 2")
    A(f"v_lshrrev_b32 v5, 4, v0")
    A(f"v_and_b32 v6, 15, v0")
    A(f"v_lshlrev_b32 v7, 1, v5")
    A(f"v_xor_b32 v7, v7, v6")
    A(f"v_lshlrev_b32 v7, 4, v7")
    A(f"v_lshl_add_u32 {v(DV)}, v5, 8, v7")
    A(f"v_xor_b32 {v(DV+1)}, 128, {v(DV)}")
    A(f"s_mov_b32 {s(SLA)}, 0"); A(f"s_mov_b32 {s(SLB)}, 32768"); A(f"s_mov_b32 {s(SLC)}, 65536")
    A(f"s_mov_b32 {s(VSA)}, {VS0}"); A(f"s_mov_b32 {s(VSB)}, {VS0+32768}")
    A(f"s_lshl_b32 {s(T4)}, {s(KQ)}, 13")
    A(f"s_cmp_eq_u32 {s(MODE)}, 0")
    A("s_cbranch_scc0 L_a_pre2")
    A(f"s_cmp_eq_u32 {s(HH)}, 0")
    A("s_cbranch_scc1 L_a_setup")
    def ld8(r, step_s, slot, throttle):
        A(f"s_xor_b32 {s(T0)}, {step_s}, {s(ROT)}")
        A(f"s_lshl_b32 {s(T0)}, {s(T0)}, 15")
        A(f"s_add_u32 {s(T0)}, {s(T0)}, {s(T4)}")
        A(f"s_add_u32 m0, {s(slot)}, {s(T4)}")
        for j in range(8):
            if j == 4:
                A(f"s_add_u32 m0, m0, 4096"); A(f"s_add_u32 {s(T0)}, {s(T0)}, 4096")
            if throttle: A(f"s_waitcnt vmcnt({opt.depth-1})")
            dma(DV + ((j >> 1) & 1), r, s(T0), (j & 3)*1024, opt.kvpolB)
    ld8(R0, "0", SLA, True); ld8(R1, "0", VSA, True); ld8(R0, "1", SLB, True)
    A(f"s_mov_b32 {s(CNT)}, 0")
    L("L_l_loop")
    A(f"s_cmp_eq_u32 {s(CNT)}, 15")
    A("s_cbranch_scc1 L_l_last")
    A("s_waitcnt vmcnt(8)")
    A("s_barrier")
    A(f"s_add_u32 {s(T2)}, {s(CNT)}, 1")
    ld8(R1, s(T2), VSB, True)
    A(f"s_cmp_eq_u32 {s(CNT)}, 14")
    A("s_cbranch_scc1 L_l_nok")
    A(f"s_add_u32 {s(T2)}, {s(CNT)}, 2")
    ld8(R0, s(T2), SLC, True)
    L("L_l_nok")
    A(f"s_mov_b32 {s(T0)}, {s(SLA)}"); A(f"s_mov_b32 {s(SLA)}, {s(SLB)}"); A(f"s_mov_b32 {s(SLB)}, {s(SLC)}"); A(f"s_mov_b32 {s(SLC)}, {s(T0)}")
    A(f"s_mov_b32 {s(T0)}, {s(VSA)}"); A(f"s_mov_b32 {s(VSA)}, {s(VSB)}"); A(f"s_mov_b32 {s(VSB)}, {s(T0)}")
    A(f"s_add_u32 {s(CNT)}, {s(CNT)}, 1")
    A("s_branch L_l_loop")
    L("L_l_last")
    A("s_waitcnt vmcnt(0)")
    A("s_barrier")
    A("s_barrier")
    A("s_barrier")
    A("s_branch L_a_pub")
    L("L_a_pre2")
    A(f"s_lshl_b32 {s(T5)}, {s(HH)}, 12")
    A(f"s_add_u32 {s(T5)}, {s(T5)}, {s(T4)}")
    def ld4(r, step_s, slot):
        A(f"s_xor_b32 {s(T0)}, {step_s}, {s(ROT)}")
        A(f"s_lshl_b32 {s(T0)}, {s(T0)}, 15")
        A(f"s_add_u32 m0, {s(slot)}, {s(T5)}")
        A(f"s_add_u32 {s(T0)}, {s(T0)}, {s(T5)}")
        for j in range(4):
            dma(DV + ((j >> 1) & 1), r, s(T0), j*1024, opt.kvpolA)
    ld4(R0, "0", SLA); ld4(R1, "0", VSA); ld4(R0, "1", SLB)
    if opt.prio:
        A(f"s_cmp_eq_u32 {s(HH)}, 0")
        A("s_cbranch_scc1 L_a_setup")
        A("s_setprio 1")
    L("L_a_setup")
    C("Q fragments")
    A(f"s_mul_i32 {s(T0)}, {s(HH)}, {Q1-Q0}")
    A(f"s_add_u32 {s(T0)}, {s(T0)}, {Q0}")
    A(f"v_lshl_add_u32 v7, v0, 4, {s(T0)}")
    for p in range(12): A(f"ds_read_b128 {v(QQ+4*p,4)}, v7 offset:{p*1024}")
    C("K fragment address: row 8(i>>2)+(i&3), chunk g ^ ((i&7)<<1)")
    A(f"v_lshrrev_b32 v7, 2, v6")
    A(f"v_and_b32 v8, 3, v6")
    A(f"v_lshl_add_u32 v8, v7, 3, v8")
    A(f"v_and_b32 v9, 7, v6")
    A(f"v_lshlrev_b32 v9, 1, v9")
    A(f"v_xor_b32 v9, v9, v5")
    A(f"v_lshlrev_b32 v9, 4, v9")
    A(f"v_lshl_add_u32 v9, v8, 8, v9")
    A(f"v_add_u32 {v(KB)}, {s(T4)}, v9")
    C("V^T fragment address: row 8g+r, 32B group (2kq ^ f'), 8B piece c'")
    A(f"v_and_b32 v8, 1, v5")
    A(f"v_lshl_or_b32 v8, v8, 2, v7")
    A(f"s_lshl_b32 {s(T0)}, {s(KQ)}, 1")
    A(f"v_xor_b32 v8, {s(T0)}, v8")
    A(f"v_lshlrev_b32 v8, 5, v8")
    A(f"v_lshl_add_u32 v7, v5, 3, v7")
    A(f"v_lshl_add_u32 v8, v7, 8, v8")
    A(f"v_and_b32 v9, 3, v0")
    A(f"v_lshl_add_u32 v8, v9, 3, v8")
    A(f"v_add_u32 {v(VB)}, {s(T4)}, v8")
    for r in range(4): A(f"v_mov_b32 {v(ONES+r)}, 0x3f803f80")
    for r in range(24): A(f"v_mov_b32 {v(NM+r)}, 0")
    for r in range(96): A(f"v_mov_b32 {v(OO+r)}, 0")
    A(f"s_mov_b32 {s(THR)}, 0xff800000")
    A(f"s_mov_b32 {s(LB)}, 0xff800000")
    A(f"s_mov_b32 {s(CNT)}, 0")
    A("s_waitcnt lgkmcnt(0)")
    L("L_c_loop")
    A(f"s_cmp_eq_u32 {s(CNT)}, 15")
    A("s_cbranch_scc1 L_c_w0")
    A("s_waitcnt vmcnt(4)")
    A("s_branch L_c_w1")
    L("L_c_w0")
    A("s_waitcnt vmcnt(0)")
    L("L_c_w1")
    A(f"v_add_u32 v8, {s(SLA)}, {v(KB)}")
    for c in range(1, 4): A(f"v_xor_b32 {v(8+c)}, {c*64}, v8")
    A("s_barrier")
    for c in range(4):
        for kb in range(2):
            A(f"ds_read_b128 {v(KV+(c*2+kb)*4,4)}, {v(8+c)} offset:{kb*1024}")
    A(f"s_cmp_eq_u32 {s(MODE)}, 0")
    A("s_cbranch_scc1 L_c_nold")
    A(f"s_cmp_eq_u32 {s(CNT)}, 15")
    A("s_cbranch_scc1 L_c_nold")
    A(f"s_add_u32 {s(T2)}, {s(CNT)}, 1")
    ld4(R1, s(T2), VSB)
    A(f"s_cmp_eq_u32 {s(CNT)}, 14")
    A("s_cbranch_scc1 L_c_nold")
    A(f"s_add_u32 {s(T2)}, {s(CNT)}, 2")
    ld4(R0, s(T2), SLC)
    L("L_c_nold")
    A(f"v_add_u32 v8, {s(VSA)}, {v(VB)}")
    for d in range(1, 8): A(f"v_xor_b32 {v(8+d)}, {d*32}, v8")
    for c in range(4):
        for kb in range(2):
            f = c*2 + kb
            A(f"s_waitcnt lgkmcnt({7+f})")
            for qb in range(3):
                mfma(SS+qb*8+kb*4, KV+f*4, QQ+(c*3+qb)*4, (NM+qb*4) if c == 0 else SS+qb*8+kb*4)
            A(f"ds_read_b64_tr_b16 {v(KV+f*4,2)}, {v(8+f)}")
            A(f"ds_read_b64_tr_b16 {v(KV+f*4+2,2)}, {v(8+f)} offset:1024")
    A(f"s_mov_b32 {s(T0)}, {s(SLA)}"); A(f"s_mov_b32 {s(SLA)}, {s(SLB)}"); A(f"s_mov_b32 {s(SLB)}, {s(SLC)}"); A(f"s_mov_b32 {s(SLC)}, {s(T0)}")
    A(f"s_mov_b32 {s(T0)}, {s(VSA)}"); A(f"s_mov_b32 {s(VSA)}, {s(VSB)}"); A(f"s_mov_b32 {s(VSB)}, {s(T0)}")
    C("running-max guard: every score of the tile within THR of the reference max, else update it")
    order = [SS+qb*8+kb*4+r for kb in range(2) for qb in range(3) for r in range(4)]
    A(f"v_max3_f32 v5, {v(order[0])}, {v(order[1])}, {v(order[2])}")
    A(f"v_max3_f32 v6, {v(order[3])}, {v(order[4])}, {v(order[5])}")
    k = 6; t = 0
    while k < 24:
        A(f"v_max3_f32 {v(5+t)}, {v(order[k])}, {v(order[k+1])}, {v(5+t)}"); k += 2; t ^= 1
    A(f"v_max_f32 v5, v5, v6")
    A(f"v_cmp_nge_f32 vcc, {s(THR)}, v5")
    A("s_cbranch_vccnz L_c_rare")
    L("L_c_back")
    for qb in range(3):
        for r in range(8): A(f"v_exp_f32 {v(SS+qb*8+r)}, {v(SS+qb*8+r)}")
    for qb in range(3):
        for r in range(4): A(f"v_cvt_pk_bf16_f32 {v(SS+qb*8+r)}, {v(SS+qb*8+2*r)}, {v(SS+qb*8+2*r+1)}")
    A("s_waitcnt lgkmcnt(0)")
    for qb in range(3): mfma(LS+qb*4, ONES, SS+qb*8, LS+qb*4)
    for d in range(8):
        for qb in range(3): mfma(OO+(d*3+qb)*4, KV+d*4, SS+qb*8, OO+(d*3+qb)*4)
    A(f"s_add_u32 {s(CNT)}, {s(CNT)}, 1")
    A(f"s_cmp_lt_u32 {s(CNT)}, 16")
    A("s_cbranch_scc1 L_c_loop")
    A("s_branch L_c_done")
    L("L_c_rare")
    for qb in range(3):
        b = SS + qb*8
        A(f"v_max3_f32 v5, {v(b)}, {v(b+1)}, {v(b+2)}")
        A(f"v_max3_f32 v5, {v(b+3)}, {v(b+4)}, v5")
        A(f"v_max3_f32 v5, {v(b+5)}, {v(b+6)}, v5")
        A(f"v_max_f32 v5, {v(b+7)}, v5")
        A(f"v_mov_b32 v6, v5")
        A(f"v_permlane32_swap_b32 v6, v5")
        A(f"v_max_f32 v5, v5, v6")
        A(f"v_mov_b32 v6, v5")
        A(f"v_permlane16_swap_b32 v6, v5")
        A(f"v_max3_f32 v5, v5, v6, {s(LB)}")
        A(f"v_max_f32 v6, 0, v5")
        A(f"v_exp_f32 v6, -v6")
        for r in range(4): A(f"v_sub_f32 {v(NM+qb*4+r)}, {v(NM+qb*4+r)}, v5")
        for r in range(8): A(f"v_sub_f32 {v(b+r)}, {v(b+r)}, v5")
        for r in range(4): A(f"v_mul_f32 {v(LS+qb*4+r)}, {v(LS+qb*4+r)}, v6")
        for d in range(8):
            for r in range(4): A(f"v_mul_f32 {v(OO+(d*3+qb)*4+r)}, {v(OO+(d*3+qb)*4+r)}, v6")
    A(f"s_mov_b32 {s(THR)}, {hex(f2u(opt.T))}")
    A(f"s_mov_b32 {s(LB)}, 0")
    A("s_branch L_c_back")
    L("L_c_done")
    if opt.prio: A("s_setprio 0")
    A(f"s_mul_i32 {s(T0)}, {s(HH)}, 73728")
    A(f"v_lshl_add_u32 v5, v0, 4, {s(T0)}")
    for j in range(1, 4):
        A(f"s_xor_b32 {s(T1)}, {s(KQ)}, {j}")
        A(f"s_mul_i32 {s(T1)}, {s(T1)}, 18432")
        A(f"s_add_u32 {s(T1)}, {s(T1)}, {(j-1)*6144}")
        A(f"v_add_u32 {v(8+j)}, {s(T1)}, v5")
    A(f"s_mul_i32 {s(T1)}, {s(KQ)}, 18432")
    A(f"v_add_u32 v8, {s(T1)}, v5")
    A(f"s_mul_i32 {s(T0)}, {s(HH)}, 1536")
    A(f"s_lshl_b32 {s(T1)}, {s(KQ)}, 3")
    A(f"s_add_u32 {s(T0)}, {s(T0)}, {s(T1)}")
    A(f"s_add_u32 {s(T0)}, {s(T0)}, {CST}")
    A(f"v_and_b32 v6, 15, v0")
    A(f"v_lshl_add_u32 v12, v6, 5, {s(T0)}")
    for j in range(1, 4): A(f"v_xor_b32 {v(12+j)}, {j*8}, v12")
    A("s_barrier")
    for qb in range(3):
        A(f"v_mov_b32 {v(NM+qb*4+1)}, {v(LS+qb*4)}")
        A(f"ds_write_b64 v12, {v(NM+qb*4,2)} offset:{qb*512}")
    for j in range(1, 4):
        for p in range(6):
            A(f"ds_write_b128 {v(8+j)}, {v(OO+(j*6+p)*4,4)} offset:{p*1024}")
    A("s_waitcnt lgkmcnt(0)")
    A("s_barrier")
    ST = SS
    for qb in range(3):
        for j in range(1, 4):
            A(f"ds_read_b64 {v(ST+qb*8+(j-1)*2,2)}, {v(12+j)} offset:{qb*512}")
    PR = OO + 24
    for j in range(1, 4):
        for p in range(6):
            if j == 2 and p == 0: A("s_waitcnt lgkmcnt(6)")
            A(f"ds_read_b128 {v(PR+((j-1)*6+p)*4,4)}, v8 offset:{(j-1)*6144+p*1024}")
    FF = KV
    for qb in range(3):
        a = ST + qb*8; n = NM + qb*4; f = FF + qb*4
        A(f"v_min3_f32 v5, {v(n)}, {v(a)}, {v(a+2)}")
        A(f"v_min_f32 v5, v5, {v(a+4)}")
        A(f"v_sub_f32 {v(f)}, v5, {v(n)}")
        for j in range(1, 4): A(f"v_sub_f32 {v(f+j)}, v5, {v(a+2*(j-1))}")
        for j in range(4): A(f"v_exp_f32 {v(f+j)}, {v(f+j)}")
        A(f"v_mul_f32 v6, {v(f)}, {v(n+1)}")
        for j in range(1, 4): A(f"v_fmac_f32 v6, {v(f+j)}, {v(a+2*(j-1)+1)}")
        A(f"v_rcp_f32 v6, v6")
        for j in range(4): A(f"v_mul_f32 {v(f+j)}, {v(f+j)}, v6")
    for p in range(6):
        for r in range(4): A(f"v_mul_f32 {v(OO+p*4+r)}, {v(OO+p*4+r)}, {v(FF+(p%3)*4)}")
    for j in range(1, 4):
        A(f"s_waitcnt lgkmcnt({(3-j)*6})")
        for p in range(6):
            for r in range(4): A(f"v_fmac_f32 {v(OO+p*4+r)}, {v(PR+((j-1)*6+p)*4+r)}, {v(FF+(p%3)*4+j)}")
    A(f"s_add_u32 {s(T0)}, {s(ITEM)}, {s(HH)}")
    A(f"s_mul_i32 {s(T0)}, {s(T0)}, 12288")
    A(f"s_mul_i32 {s(T1)}, {s(KQ)}, 3072")
    A(f"s_add_u32 {s(T0)}, {s(T0)}, {s(T1)}")
    A(f"v_lshlrev_b32 v5, 4, v0")
    for qb in range(3):
        d = KV + 16 + qb*4
        A(f"v_cvt_pk_bf16_f32 {v(d)}, {v(OO+qb*4)}, {v(OO+qb*4+1)}")
        A(f"v_cvt_pk_bf16_f32 {v(d+1)}, {v(OO+qb*4+2)}, {v(OO+qb*4+3)}")
        A(f"v_cvt_pk_bf16_f32 {v(d+2)}, {v(OO+12+qb*4)}, {v(OO+12+qb*4+1)}")
        A(f"v_cvt_pk_bf16_f32 {v(d+3)}, {v(OO+12+qb*4+2)}, {v(OO+12+qb*4+3)}")
        A(f"buffer_store_dwordx4 {v(d,4)}, v5, {s(R2,4)}, {s(T0)} offen offset:{qb*1024} sc1")
    A("s_waitcnt vmcnt(0)")
    L("L_a_pub")
    A("s_barrier")
    C("publish: wave 0 sets the flag(s) of this item")
    A(f"s_cmp_eq_u32 {s(WV)}, 0")
    A("s_cbranch_scc0 L_a_ret")
    A(f"s_lshl_b32 {s(T0)}, {s(ITEM)}, 2")
    A(f"s_add_u32 {s(T0)}, {s(T0)}, {WS_OF}")
    A(f"v_lshlrev_b32 v5, 2, v0")
    A(f"v_mov_b32 v6, 1")
    A(f"s_lshl_b32 {s(T1)}, 2, {s(MODE)}")
    A(f"s_sub_u32 {s(T1)}, {s(T1)}, 1")
    A(f"s_mov_b32 exec_lo, {s(T1)}")
    A(f"s_mov_b32 exec_hi, 0")
    A(f"buffer_store_dword v6, v5, {s(R2,4)}, {s(T0)} offen sc1")
    A(f"s_mov_b64 exec, -1")
    L("L_a_ret")
    A(f"s_setpc_b64 {s(LINK,2)}")

npoll = [0]
def poll(r, vaddr, soff, val, vtmp):
    k = npoll[0]; npoll[0] += 1
    A(f"s_mov_b32 {s(SPIN)}, 0")
    L(f"L_poll{k}")
    A(f"buffer_load_dword {v(vtmp)}, {v(vaddr)}, {s(r,4)}, {soff} offen sc1")
    A("s_waitcnt vmcnt(0)")
    A(f"v_cmp_ne_u32 vcc, {val}, {v(vtmp)}")
    A(f"s_cbranch_vccz L_polld{k}")
    A("s_sleep 4")
    A(f"s_add_u32 {s(SPIN)}, {s(SPIN)}, 1")
    A(f"s_cmp_lt_u32 {s(SPIN)}, 0x40000")
    A(f"s_cbranch_scc1 L_poll{k}")
    L(f"L_polld{k}")

def gen_out():
    VO, VW, TR = 1, 2, 6
    ACC, RING, WW = 16, 64, 128
    L("F_out")
    A(f"v_lshlrev_b32 {v(VO)}, 4, v0")
    A(f"v_lshrrev_b32 v10, 3, v0")
    A(f"v_and_b32 v11, 7, v0")
    A(f"v_and_b32 v12, 6, v10")
    A(f"v_xor_b32 v11, v11, v12")
    A(f"v_lshlrev_b32 v11, 4, v11")
    A(f"v_lshl_add_u32 {v(VW)}, v10, 11, v11")
    for j in range(1, 4): A(f"v_add_u32 {v(VW+j)}, {j*(16384-1024)}, {v(VW)}")
    A(f"s_lshl_b32 {s(T4)}, {s(KH)}, 3")
    A(f"s_add_u32 {s(T4)}, {s(T4)}, {s(WV)}")
    A(f"s_lshl_b32 {s(T5)}, {s(T4)}, 19")
    A(f"s_lshl_b32 {s(T6)}, {s(WV)}, 14")
    def wissue(t):
        A(f"s_xor_b32 {s(T0)}, {s(ROT)}, {t}")
        A(f"s_lshl_b32 {s(T0)}, {s(T0)}, 16")
        A(f"s_add_u32 m0, {s(T6)}, {(t&3)*4096}")
        A(f"s_add_u32 {s(T0)}, {s(T0)}, {s(T5)}")
        for j in range(4): dma(VW+j, R1, s(T0), j*1024, opt.wpol)
    for t in range(4): wissue(t)
    C("W^T fragment address: row 4g+r (= lane>>2), 32B group (2kh ^ nbj ^ f2), 8B piece c'")
    A(f"v_lshrrev_b32 v10, 2, v0")
    A(f"v_bfe_u32 v11, v0, 3, 2")
    A(f"s_lshl_b32 {s(T0)}, {s(KH)}, 1")
    A(f"v_xor_b32 v11, {s(T0)}, v11")
    A(f"v_lshlrev_b32 v11, 5, v11")
    A(f"v_lshl_add_u32 v11, v10, 7, v11")
    A(f"v_and_b32 v12, 3, v0")
    A(f"v_lshl_add_u32 v11, v12, 3, v11")
    A(f"v_add_u32 {v(TR)}, {s(T6)}, v11")
    for n in range(1, 4): A(f"v_xor_b32 {v(TR+n)}, {n*32}, {v(TR)}")
    for t in range(8):
        A(f"s_waitcnt vmcnt({12 if t <= 4 else (7-t)*4})")
        for n in range(4):
            A(f"ds_read_b64_tr_b16 {v(WW+(t*4+n)*4,2)}, {v(TR+n)} offset:{(t&3)*4096}")
            A(f"ds_read_b64_tr_b16 {v(WW+(t*4+n)*4+2,2)}, {v(TR+n)} offset:{(t&3)*4096+2048}")
        if t < 4:
            A("s_waitcnt lgkmcnt(0)")
            wissue(t+4)
    A(f"s_mov_b32 {s(CNT)}, 0")
    L("L_o_pass")
    C("wait for the two heads of this wave")
    A(f"s_lshl_b32 {s(T0)}, {s(SIDE)}, 3")
    A(f"s_add_u32 {s(T0)}, {s(T0)}, {s(BAT)}")
    A(f"s_lshl_b32 {s(T7)}, {s(T0)}, 4")
    A(f"s_add_u32 {s(T7)}, {s(T7)}, {s(T4)}")
    A(f"s_lshl_b32 {s(T1)}, {s(T7)}, 3")
    A(f"s_add_u32 {s(T1)}, {s(T1)}, {WS_OF}")
    A(f"v_and_b32 v10, 1, v0")
    A(f"v_lshlrev_b32 v10, 2, v10")
    poll(R2, 10, s(T1), 1, 11)
    stamp(10)
    A(f"s_mul_i32 {s(T7)}, {s(T7)}, 24576")
    def oissue(t):
        A(f"s_xor_b32 {s(T0)}, {s(ROT)}, {t}")
        A(f"s_mul_i32 {s(T0)}, {s(T0)}, 3072")
        A(f"s_add_u32 {s(T0)}, {s(T0)}, {s(T7)}")
        for qb in range(3):
            A(f"buffer_load_dwordx4 {v(RING+((t&3)*3+qb)*4,4)}, {v(VO)}, {s(R2,4)}, {s(T0)} offen offset:{qb*1024} sc1")
    for t in range(4): oissue(t)
    A("s_waitcnt lgkmcnt(0)")
    for t in range(8):
        A(f"s_waitcnt vmcnt({9 if t <= 4 else (7-t)*3})")
        for qb in range(3):
            for n in range(4):
                mfma(ACC+(n*3+qb)*4, WW+(t*4+n)*4, RING+((t&3)*3+qb)*4, None if t == 0 else ACC+(n*3+qb)*4)
        if t < 4: oissue(t+4)
    C("reduce over the 8 waves through LDS")
    A(f"v_add_u32 v10, {s(T6)}, {v(VO)}")
    for p in (0, 3, 6, 9, 1, 4, 7, 10, 2, 5, 8, 11):
        A(f"ds_write_b128 v10, {v(ACC+p*4,4)} offset:{p*1024}")
    A("s_waitcnt lgkmcnt(0)")
    A("s_barrier")
    A(f"s_cmp_ge_u32 {s(WV)}, 6")
    A("s_cbranch_scc1 L_o_skip")
    A(f"s_cmp_ge_u32 {s(WV)}, 3")
    A(f"s_cselect_b32 {s(T0)}, 3, 0")
    A(f"s_add_u32 {s(T0)}, {s(T0)}, {s(WV)}")
    A(f"s_lshl_b32 {s(T0)}, {s(T0)}, 10")
    A(f"v_add_u32 v10, {s(T0)}, {v(VO)}")
    A(f"v_add_u32 v11, 65536, v10")
    for w in range(8):
        for h in range(2):
            if w == 7 and h == 1: A("s_waitcnt lgkmcnt(8)")
            A(f"ds_read_b128 {v(ACC+(w*2+h)*4,4)}, {v(10 + (w>>2))} offset:{(w&3)*16384 + h*3072}")
    for w in range(1, 8):
        A(f"s_waitcnt lgkmcnt({14-2*w})")
        for r in range(8): A(f"v_add_f32 {v(ACC+r)}, {v(ACC+r)}, {v(ACC+w*8+r)}")
    L("L_o_skip")
    A("s_barrier")
    A(f"s_cmp_ge_u32 {s(WV)}, 6")
    A("s_cbranch_scc1 L_o_next")
    A(f"s_lshl_b32 {s(T0)}, {s(SIDE)}, 3")
    A(f"s_add_u32 {s(T0)}, {s(T0)}, {s(BAT)}")
    A(f"s_lshl_b32 {s(T0)}, {s(T0)}, 4")
    A(f"s_add_u32 {s(T0)}, {s(T0)}, {s(CT)}")
    A(f"s_lshl_b32 {s(T0)}, {s(T0)}, 1")
    A(f"s_add_u32 {s(T0)}, {s(T0)}, {s(KH)}")
    A(f"s_cmp_ge_u32 {s(WV)}, 3")
    A(f"s_cselect_b32 {s(T1)}, 1, 0")
    A(f"s_cselect_b32 {s(T2)}, 3, 0")
    A(f"s_xor_b32 {s(T0)}, {s(T0)}, {s(T1)}")
    A(f"s_sub_u32 {s(T2)}, {s(WV)}, {s(T2)}")
    A(f"s_mul_i32 {s(T1)}, {s(T0)}, 6144")
    A(f"s_lshl_b32 {s(T3)}, {s(T2)}, 11")
    A(f"s_add_u32 {s(T1)}, {s(T1)}, {s(T3)}")
    A(f"s_add_u32 {s(T1)}, {s(T1)}, {WS_EX}")
    A(f"s_lshl_b32 {s(T0)}, {s(T0)}, 7")
    A(f"s_lshl_b32 {s(T3)}, {s(T2)}, 2")
    A(f"s_add_u32 {s(T0)}, {s(T0)}, {s(T3)}")
    A(f"s_add_u32 {s(T0)}, {s(T0)}, {WS_EF}")
    A(f"v_mov_b32 v10, 0")
    A(f"s_cmp_ge_u32 {s(WV)}, 3")
    A("s_cbranch_scc0 L_o_recv")
    A(f"buffer_store_dwordx4 {v(ACC,4)}, {v(VO)}, {s(R2,4)}, {s(T1)} offen sc1")
    A(f"buffer_store_dwordx4 {v(ACC+4,4)}, {v(VO)}, {s(R2,4)}, {s(T1)} offen offset:1024 sc1")
    A(f"v_mov_b32 v11, 1")
    A("s_waitcnt vmcnt(0)")
    A(f"s_mov_b64 exec, 1")
    A(f"buffer_store_dword v11, v10, {s(R2,4)}, {s(T0)} offen sc1")
    A(f"s_mov_b64 exec, -1")
    A("s_branch L_o_next")
    L("L_o_recv")
    poll(R2, 10, s(T0), 1, 11)
    A(f"buffer_load_dwordx4 {v(ACC+8,4)}, {v(VO)}, {s(R2,4)}, {s(T1)} offen sc1")
    A(f"buffer_load_dwordx4 {v(ACC+12,4)}, {v(VO)}, {s(R2,4)}, {s(T1)} offen offset:1024 sc1")
    A(f"s_mul_i32 {s(T0)}, {s(BAT)}, 48")
    A(f"s_lshl_b32 {s(T2)}, {s(T2)}, 4")
    A(f"s_add_u32 {s(T0)}, {s(T0)}, {s(T2)}")
    A(f"s_lshl_b32 {s(T0)}, {s(T0)}, 12")
    A(f"s_lshl_b32 {s(T1)}, {s(SIDE)}, 11")
    A(f"s_add_u32 {s(T0)}, {s(T0)}, {s(T1)}")
    A(f"s_lshl_b32 {s(T1)}, {s(CT)}, 7")
    A(f"s_add_u32 {s(T0)}, {s(T0)}, {s(T1)}")
    A(f"s_lshl_b32 {s(T1)}, {s(KH)}, 6")
    A(f"s_add_u32 {s(T0)}, {s(T0)}, {s(T1)}")
    A(f"v_and_b32 v10, 15, v0")
    A(f"v_lshrrev_b32 v11, 4, v0")
    A(f"v_lshlrev_b32 v11, 3, v11")
    A(f"v_lshl_add_u32 v10, v10, 12, v11")
    A("s_waitcnt vmcnt(0)")
    for r in range(8): A(f"v_add_f32 {v(ACC+r)}, {v(ACC+r)}, {v(ACC+8+r)}")
    for r in range(4): A(f"v_cvt_pk_bf16_f32 {v(ACC+r)}, {v(ACC+2*r)}, {v(ACC+2*r+1)}")
    A(f"buffer_store_dwordx2 {v(ACC,2)}, v10, {s(R3,4)}, {s(T0)} offen")
    A(f"buffer_store_dwordx2 {v(ACC+2,2)}, v10, {s(R3,4)}, {s(T0)} offen offset:32")
    L("L_o_next")
    A(f"s_xor_b32 {s(BAT)}, {s(BAT)}, 4")
    A(f"s_add_u32 {s(CNT)}, {s(CNT)}, 1")
    A(f"s_cmp_lt_u32 {s(CNT)}, 2")
    A("s_cbranch_scc1 L_o_pass")
    A(f"s_setpc_b64 {s(LINK,2)}")

def gen_main():
    A(f"s_cmp_ge_u32 {s(WG)}, 256")
    A("s_cbranch_scc1 L_end")
    A(f"s_load_dwordx16 {s(36,16)}, s[0:1], 0")
    A(f"s_load_dwordx8 {s(52,8)}, s[0:1], 64")
    A(f"s_load_dwordx2 {s(60,2)}, s[0:1], 96")
    A("v_lshrrev_b32 v1, 6, v0")
    A("v_and_b32 v0, 63, v0")
    A(f"v_readfirstlane_b32 {s(WV)}, v1")
    A(f"s_and_b32 {s(XCD)}, {s(WG)}, 7")
    A(f"s_bfe_u32 {s(ROLE)}, {s(WG)}, 0x10003")
    A(f"s_lshr_b32 {s(JJ)}, {s(WG)}, 4")
    A(f"s_and_b32 {s(KH)}, {s(XCD)}, 1")
    A(f"s_lshr_b32 {s(CT)}, {s(XCD)}, 1")
    A(f"s_lshl_b32 {s(CT)}, {s(CT)}, 2")
    A(f"s_and_b32 {s(T0)}, {s(JJ)}, 3")
    A(f"s_add_u32 {s(CT)}, {s(CT)}, {s(T0)}")
    A("s_waitcnt lgkmcnt(0)")
    stamp(0)
    srd(R2, P_WS, None, WS_USED)
    C("clear the hand-off flags this workgroup will set later (wave 7)")
    A(f"s_cmp_eq_u32 {s(WV)}, 7")
    A("s_cbranch_scc0 L_noclr")
    A("v_mov_b32 v2, 0")
    A(f"s_lshr_b32 {s(T0)}, {s(JJ)}, 2")
    A(f"s_lshl_b32 {s(T1)}, {s(ROLE)}, 2")
    A(f"s_add_u32 {s(T0)}, {s(T0)}, {s(T1)}")
    A(f"s_lshl_b32 {s(T0)}, {s(T0)}, 5")
    A(f"s_lshl_b32 {s(T1)}, {s(XCD)}, 2")
    A(f"s_add_u32 {s(T0)}, {s(T0)}, {s(T1)}")
    A(f"s_and_b32 {s(T1)}, {s(JJ)}, 3")
    A(f"s_add_u32 {s(T0)}, {s(T0)}, {s(T1)}")
    A(f"s_lshl_b32 {s(T0)}, {s(T0)}, 2")
    A(f"s_add_u32 {s(T0)}, {s(T0)}, {WS_OF + 1024}")
    A("s_mov_b64 exec, 1")
    A(f"buffer_store_dword v2, v2, {s(R2,4)}, {s(T0)} offen sc1")
    A(f"s_cmp_eq_u32 {s(ROLE)}, 0")
    A("s_cbranch_scc1 L_clrx")
    A(f"s_and_b32 {s(T0)}, {s(XCD)}, 1")
    A(f"s_lshl_b32 {s(T0)}, {s(T0)}, 2")
    A(f"s_lshr_b32 {s(T1)}, {s(JJ)}, 2")
    A(f"s_add_u32 {s(T0)}, {s(T0)}, {s(T1)}")
    A(f"s_lshl_b32 {s(T0)}, {s(T0)}, 4")
    A(f"s_lshr_b32 {s(T1)}, {s(XCD)}, 1")
    A(f"s_lshl_b32 {s(T1)}, {s(T1)}, 2")
    A(f"s_add_u32 {s(T0)}, {s(T0)}, {s(T1)}")
    A(f"s_and_b32 {s(T1)}, {s(JJ)}, 3")
    A(f"s_add_u32 {s(T0)}, {s(T0)}, {s(T1)}")
    A(f"s_lshl_b32 {s(T0)}, {s(T0)}, 3")
    A(f"s_add_u32 {s(T0)}, {s(T0)}, {WS_OF}")
    A(f"buffer_store_dword v2, v2, {s(R2,4)}, {s(T0)} offen sc1")
    A(f"buffer_store_dword v2, v2, {s(R2,4)}, {s(T0)} offen offset:4 sc1")
    A("s_branch L_clrd")
    L("L_clrx")
    A("s_mov_b64 exec, 0xffff")
    A(f"s_lshr_b32 {s(T0)}, {s(JJ)}, 2")
    A(f"s_lshl_b32 {s(T0)}, {s(T0)}, 4")
    A(f"s_add_u32 {s(T0)}, {s(T0)}, {s(CT)}")
    A(f"s_lshl_b32 {s(T0)}, {s(T0)}, 1")
    A(f"s_xor_b32 {s(T1)}, {s(KH)}, 1")
    A(f"s_add_u32 {s(T0)}, {s(T0)}, {s(T1)}")
    A(f"s_lshl_b32 {s(T0)}, {s(T0)}, 7")
    A(f"s_add_u32 {s(T0)}, {s(T0)}, {WS_EF}")
    A("v_lshrrev_b32 v3, 2, v0")
    A("v_lshlrev_b32 v3, 14, v3")
    A("v_and_b32 v4, 3, v0")
    A("v_lshl_add_u32 v3, v4, 2, v3")
    A(f"buffer_store_dword v2, v3, {s(R2,4)}, {s(T0)} offen sc1")
    L("L_clrd")
    A("s_mov_b64 exec, -1")
    L("L_noclr")
    def arrive():
        C("flags cleared (all vector memory drained by the first projection): count this workgroup")
        k = npoll[0]; npoll[0] += 1
        A(f"s_cmp_eq_u32 {s(WV)}, 7")
        A(f"s_cbranch_scc0 L_arr{k}")
        srd(R3, P_DBG, None, 256)
        A("v_mov_b32 v2, 0"); A("v_mov_b32 v3, 1")
        A("s_mov_b64 exec, 1")
        A(f"buffer_atomic_add v3, v2, {s(R3,4)}, 0 offen sc1")
        A("s_mov_b64 exec, -1")
        L(f"L_arr{k}")
    A(f"s_cmp_eq_u32 {s(ROLE)}, 0")
    A("s_cbranch_scc1 L_bpart")
    A(f"s_and_b32 {s(T0)}, {s(XCD)}, 1")
    A(f"s_lshl_b32 {s(T0)}, {s(T0)}, 2")
    A(f"s_lshr_b32 {s(T1)}, {s(JJ)}, 2")
    A(f"s_add_u32 {s(BAT)}, {s(T0)}, {s(T1)}")
    A(f"s_lshr_b32 {s(T2)}, {s(XCD)}, 1")
    A(f"s_lshl_b32 {s(T2)}, {s(T2)}, 2")
    A(f"s_and_b32 {s(T3)}, {s(JJ)}, 3")
    A(f"s_add_u32 {s(T2)}, {s(T2)}, {s(T3)}")
    A(f"s_lshl_b32 {s(T2)}, {s(T2)}, 1")
    A(f"s_lshl_b32 {s(ITEM)}, {s(BAT)}, 5")
    A(f"s_add_u32 {s(ITEM)}, {s(ITEM)}, {s(T2)}")
    A(f"s_add_u32 {s(ROT)}, {s(T1)}, {s(T3)}")
    A(f"s_lshl_b32 {s(ROT)}, {s(ROT)}, 1")
    A(f"s_mul_i32 {s(T0)}, {s(BAT)}, 98304")
    srd(R0, P_AX, s(T0), 98304)
    A(f"s_lshl_b32 {s(T0)}, {s(T2)}, 8")
    A(f"s_sub_u32 {s(T1)}, 8388608, {s(T0)}")
    srd(R1, P_AWQ, s(T0), s(T1))
    A(f"s_mov_b32 {s(QDST)}, {Q0}")
    A(f"s_call_b64 {s(LINK,2)}, F_qproj")
    stamp(1)
    arrive()
    A(f"s_add_u32 {s(R1)}, {s(R1)}, 256"); A(f"s_addc_u32 {s(R1+1)}, {s(R1+1)}, 0")
    A(f"s_sub_u32 {s(R1+2)}, {s(R1+2)}, 256")
    A(f"s_mov_b32 {s(QDST)}, {Q1}")
    A(f"s_call_b64 {s(LINK,2)}, F_qproj")
    stamp(2)
    A(f"s_lshl_b32 {s(T0)}, {s(BAT)}, 2")
    A(f"s_lshr_b32 {s(T1)}, {s(XCD)}, 1")
    A(f"s_add_u32 {s(T0)}, {s(T0)}, {s(T1)}")
    A(f"s_lshl_b32 {s(T0)}, {s(T0)}, 19")
    srd(R0, P_AK, s(T0), 524288)
    srd(R1, P_AV, s(T0), 524288)
    A(f"s_and_b32 {s(ROT)}, {s(JJ)}, 3")
    A(f"s_mov_b32 {s(MODE)}, 1")
    A(f"s_call_b64 {s(LINK,2)}, F_attn")
    stamp(3)
    L("L_bpart")
    A(f"s_lshr_b32 {s(T1)}, {s(JJ)}, 2")
    A(f"s_lshl_b32 {s(T0)}, {s(ROLE)}, 2")
    A(f"s_add_u32 {s(BAT)}, {s(T0)}, {s(T1)}")
    A(f"s_and_b32 {s(T3)}, {s(JJ)}, 3")
    A(f"s_lshl_b32 {s(T2)}, {s(XCD)}, 2")
    A(f"s_add_u32 {s(T2)}, {s(T2)}, {s(T3)}")
    A(f"s_lshl_b32 {s(ITEM)}, {s(BAT)}, 5")
    A(f"s_add_u32 {s(ITEM)}, {s(ITEM)}, {s(T2)}")
    A(f"s_add_u32 {s(ROT)}, {s(T1)}, {s(T3)}")
    A(f"s_lshl_b32 {s(ROT)}, {s(ROT)}, 1")
    A(f"s_mul_i32 {s(T0)}, {s(BAT)}, 98304")
    srd(R0, P_BX, s(T0), 98304)
    A(f"s_lshl_b32 {s(T0)}, {s(T2)}, 8")
    A(f"s_sub_u32 {s(T1)}, 8388608, {s(T0)}")
    srd(R1, P_BWQ, s(T0), s(T1))
    A(f"s_mov_b32 {s(QDST)}, {Q0}")
    A(f"s_call_b64 {s(LINK,2)}, F_qproj")
    stamp(4)
    A(f"s_cmp_eq_u32 {s(ROLE)}, 0")
    A("s_cbranch_scc0 L_noarr")
    arrive()
    L("L_noarr")
    A(f"s_lshl_b32 {s(T0)}, {s(ITEM)}, 19")
    srd(R0, P_BK, s(T0), 524288)
    srd(R1, P_BV, s(T0), 524288)
    A(f"s_add_u32 {s(ITEM)}, {s(ITEM)}, 256")
    A(f"s_mov_b32 {s(ROT)}, 0")
    A(f"s_mov_b32 {s(MODE)}, 0")
    A(f"s_call_b64 {s(LINK,2)}, F_attn")
    stamp(5)
    A(f"s_cmp_eq_u32 {s(ROLE)}, 0")
    A("s_cbranch_scc0 L_fin")
    C("every workgroup has cleared its flags")
    srd(R3, P_DBG, None, 256)
    A("v_mov_b32 v10, 0")
    A(f"s_movk_i32 {s(T1)}, 256")
    poll(R3, 10, "0", s(T1), 11)
    srd(R3, P_OUT, None, 8*48*2048*2)
    A(f"s_lshr_b32 {s(BAT)}, {s(JJ)}, 2")
    A(f"s_xor_b32 {s(ROT)}, {s(BAT)}, {s(JJ)}")
    A(f"s_and_b32 {s(ROT)}, {s(ROT)}, 3")
    A(f"s_lshl_b32 {s(ROT)}, {s(ROT)}, 1")
    A(f"s_lshl_b32 {s(T0)}, {s(CT)}, 7")
    A(f"s_sub_u32 {s(T1)}, 8388608, {s(T0)}")
    srd(R1, P_AWO, s(T0), s(T1))
    A(f"s_mov_b32 {s(SIDE)}, 0")
    A(f"s_call_b64 {s(LINK,2)}, F_out")
    stamp(6)
    A(f"s_lshl_b32 {s(T0)}, {s(CT)}, 7")
    A(f"s_sub_u32 {s(T1)}, 8388608, {s(T0)}")
    srd(R1, P_BWO, s(T0), s(T1))
    A(f"s_mov_b32 {s(SIDE)}, 1")
    A(f"s_call_b64 {s(LINK,2)}, F_out")
    L("L_fin")
    if opt.stamps:
        A("s_waitcnt vmcnt(0)")
        stamp(7)
        A(f"s_lshl_b32 {s(T0)}, {s(WG)}, 3")
        A(f"s_add_u32 {s(T0)}, {s(T0)}, {s(WV)}")
        A(f"s_lshl_b32 {s(T0)}, {s(T0)}, 6")
        A(f"s_add_u32 {s(T0)}, {s(T0)}, {WS_ST}")
        for k in range(16): A(f"v_mov_b32 {v(16+k)}, {s(STAMP0+k)}")
        A("v_mov_b32 v2, 0")
        A("s_mov_b64 exec, 1")
        for k in range(4): A(f"buffer_store_dwordx4 {v(16+4*k,4)}, v2, {s(R2,4)}, {s(T0)} offen offset:{16*k}")
    L("L_end")
    A("s_endpgm")

def build(path, **kw):
    for k_, v_ in kw.items(): setattr(opt, k_, v_)
    out.clear(); npoll[0] = 0
    gen_main(); gen_qproj(); gen_attn(); gen_out()
    body, n = asmtool.fix(list(out))
    head = open("cdna_kernels/" + NAME + ".s.ref").read().split("; Override launch")[0]
    txt = head + "; @launch grid=(256,1,1) block=(512,1,1) lds=163840\n"
    txt += '.amdgcn_target "amdgcn-amd-amdhsa--gfx950"\n.text\n'
    txt += f".globl {KERN}\n.p2align 8\n.type {KERN},@function\n{KERN}:\n"
    txt += "\n".join(body) + "\n"
    txt += f'''.section .rodata,"a"
.p2align 6
.amdhsa_kernel {KERN}
  .amdhsa_next_free_vgpr 256
  .amdhsa_next_free_sgpr 102
  .amdhsa_accum_offset 256
  .amdhsa_group_segment_fixed_size 0
  .amdhsa_kernarg_size 104
  .amdhsa_user_sgpr_count 2
  .amdhsa_user_sgpr_kernarg_segment_ptr 1
  .amdhsa_system_sgpr_workgroup_id_x 1
.end_amdhsa_kernel
'''
    open(path, "w").write(txt)
    return n

if __name__ == "__main__":
    kw = {}
    for a in sys.argv[2:]:
        k_, v_ = a.split("=", 1)
        try: v_ = eval(v_)
        except Exception: pass
        kw[k_] = v_
    print("nops inserted:", build(sys.argv[1], **kw))
```
